```python
import torch

def _softmax(x, axis=-1):
    return torch.softmax(x, dim=axis)
def _gelu(x):
    return torch.nn.functional.gelu(x, approximate="tanh")
def _silu(x):
    return torch.nn.functional.silu(x)
def _sigmoid(x):
    return torch.sigmoid(x)
def _layernorm(x, axis=-1, eps=1e-5):
    m = x.mean(dim=axis, keepdim=True)
    v = x.var(dim=axis, keepdim=True, unbiased=False)
    return (x - m) / torch.sqrt(v + eps)
def _scatter_add(tgt, idx, src, axis=0):
    return tgt.clone().index_add_(axis, idx, src)
def _segment_sum(src, seg, n):
    out = torch.zeros((n,) + src.shape[1:], dtype=src.dtype)
    return out.index_add_(0, seg, src)
def _pad(x, pw):
    flat = tuple(v for pair in reversed(pw) for v in pair)
    return torch.nn.functional.pad(x, flat)

kernel_name = 'interleave_layers__gqa_block_cached__sliding_block_cached__decode'

def setup_inputs():

    _w = (lambda a: (lambda t: t.to(torch.bfloat16) if t.is_floating_point() else t)(torch.as_tensor(a)))
    def _A_setup():
        B, Sq, D = 2, 1, 640
        Hq, Hkv, Sk, Dh = 32, 32, 4096, 192
        assert Hq % Hkv == 0, (Hq, Hkv)
        return {
            "x": _w((lambda *s: torch.randn(*s, dtype=torch.bfloat16) * 0.1)(B, Sq, D)),
            "k_cache": _w((lambda *s: torch.randn(*s, dtype=torch.bfloat16) * 0.8)(B, Hkv, Sk, Dh)),
            "v_cache": _w((lambda *s: torch.randn(*s, dtype=torch.bfloat16) * 3.2)(B, Hkv, Sk, Dh)),
            "wq": _w((lambda *s: torch.randn(*s, dtype=torch.bfloat16) * 0.8)(D, Hq * Dh) * (D ** -0.5)),
            "wo": _w((lambda *s: torch.randn(*s, dtype=torch.bfloat16) * 3.2)(Hq * Dh, D) * ((Hq * Dh) ** -0.5)),
        }
    _A_in = _A_setup()

    def _B_setup():
        B, Sq, D = 2, 1, 640
        Hq, Hkv, Sk, Dh = 32, 32, 4096, 192
        assert Hq % Hkv == 0, (Hq, Hkv)
        return {
            "x": _w((lambda *s: torch.randn(*s, dtype=torch.bfloat16) * 0.1)(B, Sq, D)),
            "k_cache": _w((lambda *s: torch.randn(*s, dtype=torch.bfloat16) * 1.6)(B, Hkv, Sk, Dh)),
            "v_cache": _w((lambda *s: torch.randn(*s, dtype=torch.bfloat16) * 1.6)(B, Hkv, Sk, Dh)),
            "wq": _w((lambda *s: torch.randn(*s, dtype=torch.bfloat16) * 1.6)(D, Hq * Dh) * (D ** -0.5)),
            "wo": _w((lambda *s: torch.randn(*s, dtype=torch.bfloat16) * 1.6)(Hq * Dh, D) * ((Hq * Dh) ** -0.5)),
        }
    _B_in = _B_setup()

    return {
        "A_x": _A_in["x"],
        "A_k_cache": _A_in["k_cache"],
        "A_v_cache": _A_in["v_cache"],
        "A_wq": _A_in["wq"],
        "A_wo": _A_in["wo"],
        "B_x": _B_in["x"],
        "B_k_cache": _B_in["k_cache"],
        "B_v_cache": _B_in["v_cache"],
        "B_wq": _B_in["wq"],
        "B_wo": _B_in["wo"],
    }

def reference(A_x, A_k_cache, A_v_cache, A_wq, A_wo, B_x, B_k_cache, B_v_cache, B_wq, B_wo):
    def _A_ref(x, k_cache, v_cache, wq, wo):
        B, Sq, D = x.shape
        Hq, Dh = 32, 192
        Hkv = k_cache.shape[1]
        rep = Hq // Hkv
        q = (lambda x, *d: x.permute(*d))((x @ wq).reshape(B, Sq, Hq, Dh), 0, 2, 1, 3)
        k = (lambda x, n, axis: torch.repeat_interleave(x, n, dim=axis))(k_cache, rep, axis=1)
        v = (lambda x, n, axis: torch.repeat_interleave(x, n, dim=axis))(v_cache, rep, axis=1)
        scores = torch.einsum("bhqd,bhkd->bhqk", q, k) * (Dh ** -0.5)
        p = _softmax(scores, axis=-1)
        o = torch.einsum("bhqk,bhkd->bhqd", p, v)
        return (lambda x, *d: x.permute(*d))(o, 0, 2, 1, 3).reshape(B, Sq, Hq * Dh) @ wo

    def _B_ref(x, k_cache, v_cache, wq, wo):
        B, Sq, D = x.shape
        Hq, Dh = 32, 192
        Hkv, Sk = k_cache.shape[1], k_cache.shape[2]
        W = min(4096, max(256, Sk // 4))
        rep = Hq // Hkv
        q = (lambda x, *d: x.permute(*d))((x @ wq).reshape(B, Sq, Hq, Dh), 0, 2, 1, 3)
        k = (lambda x, n, axis: torch.repeat_interleave(x, n, dim=axis))(k_cache[:, :, Sk - W:, :], rep, axis=1)
        v = (lambda x, n, axis: torch.repeat_interleave(x, n, dim=axis))(v_cache[:, :, Sk - W:, :], rep, axis=1)
        scores = torch.einsum("bhqd,bhkd->bhqk", q, k) * (Dh ** -0.5)
        p = _softmax(scores, axis=-1)
        o = torch.einsum("bhqk,bhkd->bhqd", p, v)
        return (lambda x, *d: x.permute(*d))(o, 0, 2, 1, 3).reshape(B, Sq, Hq * Dh) @ wo

    x = A_x
    x = x + _A_ref(_layernorm(x, axis=-1), A_k_cache, A_v_cache, A_wq, A_wo)
    x = x + _B_ref(_layernorm(x, axis=-1), B_k_cache, B_v_cache, B_wq, B_wo)
    x = x + _A_ref(_layernorm(x, axis=-1), A_k_cache, A_v_cache, A_wq, A_wo)
    x = x + _B_ref(_layernorm(x, axis=-1), B_k_cache, B_v_cache, B_wq, B_wo)
    return x
```

```python
from mbcommon import *
def gen(nload=1, depth=32, frac=2, poll=0, pat="P2s", ntiles=144, lds=True):
    b = []; a = b.append
    a("s_load_dwordx4 s[4:7], s[0:1], 0")
    a("v_and_b32 v1, 63, v0\nv_lshrrev_b32 v4, 6, v0\ns_nop 1\nv_readfirstlane_b32 s16, v4")
    a("s_waitcnt lgkmcnt(0)")
    a("s_cmp_eq_u64 s[4:5], 0\ns_cbranch_scc1 Lend\ns_cmp_eq_u64 s[6:7], 0\ns_cbranch_scc1 Lend")
    a("s_mov_b32 s8, s4\ns_mov_b32 s9, s5\ns_mov_b32 s10, 0x40000000\ns_mov_b32 s11, 0x20000")
    a("s_mov_b32 s12, s6\ns_mov_b32 s13, s7\ns_mov_b32 s14, 0x100000\ns_mov_b32 s15, 0x20000")
    a(f"s_lshr_b32 s17, s2, 3\ns_and_b32 s17, s17, {frac-1}\ns_cmp_lg_u32 s17, 0\ns_cbranch_scc1 Lend")
    if pat == "P2s":
        a("v_lshrrev_b32 v2, 3, v1\nv_mul_u32_u24 v2, 3072, v2\nv_and_b32 v3, 7, v1\nv_lshl_add_u32 v2, v3, 4, v2")
    else:
        a("v_lshlrev_b32 v2, 4, v1")
    a("v_lshlrev_b32 v8, 4, v1")
    a("v_mov_b32 v5, 0\nds_write_b32 v5, v5 offset:4\ns_waitcnt lgkmcnt(0)\ns_barrier")
    a("s_cmp_eq_u32 s16, 0\ns_cbranch_scc1 Lpoll")
    a(f"s_cmp_gt_u32 s16, {nload}\ns_cbranch_scc1 Lend")
    a("s_mul_i32 s17, s2, 4128768\ns_mul_i32 s18, s16, 983040\ns_add_u32 s17, s17, s18")
    a("s_sleep 40")
    a("s_memrealtime s[40:41]")
    n = ntiles // nload
    a("s_mul_i32 m0, s16, 24576")
    for t in range(n):
        o = (t // 24) * 24576 + (t % 24) * (128 if pat == "P2s" else 1024)
        a(f"s_add_u32 s22, s17, {o}")
        if lds:
            a(f"buffer_load_dwordx4 v2, s[8:11], s22 offen nt lds")
        else:
            a(f"buffer_load_dwordx4 v[{20+4*(t%32)}:{23+4*(t%32)}], v2, s[8:11], s22 offen nt")
        a("s_nop 0")
        a(f"s_waitcnt vmcnt({depth // nload})")
    a("s_waitcnt vmcnt(0)")
    a("s_memrealtime s[42:43]\ns_waitcnt lgkmcnt(0)")
    a("v_mov_b32 v5, 4\nv_mov_b32 v6, 1\nds_write_b32 v5, v6\ns_waitcnt lgkmcnt(0)")
    a("s_sub_u32 s42, s42, s40\ns_lshl_b32 s17, s2, 4\ns_lshl_b32 s18, s16, 2\ns_add_u32 s17, s17, s18\nv_mov_b32 v5, s17\nv_mov_b32 v6, s42")
    a("buffer_store_dword v6, v5, s[12:15], 0 offen")
    a("s_branch Lend")
    a("Lpoll:")
    if poll:
        a("s_mov_b32 s24, 20000\ns_lshl_b32 s17, s2, 14\ns_add_u32 s17, s17, 0x3f000000")
        a("Lp:")
        for i in range(poll):
            a(f"s_add_u32 s22, s17, {1024*i}\nbuffer_load_dwordx4 v[{20+4*i}:{23+4*i}], v8, s[8:11], s22 offen sc1")
        a("s_waitcnt vmcnt(0)")
        a("v_mov_b32 v5, 4\nds_read_b32 v6, v5\ns_waitcnt lgkmcnt(0)\nv_readfirstlane_b32 s25, v6\ns_cmp_eq_u32 s25, 1\ns_cbranch_scc1 Lend")
        a("s_sub_u32 s24, s24, 1\ns_cbranch_scc0 Lp")
    a("Lend:")
    return "\n".join(b)
if __name__ == "__main__":
    if not os.path.exists("/dev/kfd"):
        assemble(wrap("k", gen(poll=10)), "mbk"); sys.exit(0)
    g = Gpu(); cl = g.cl
    data = cl.DeviceBuffer(1 << 30); g.memset(data, 3)
    st = cl.DeviceBuffer(1 << 20)
    def run(**kw):
        k = cl.AsmKernel(assemble(wrap("k", gen(**kw)), "mbk"), "k")
        out = []
        for rep in range(5):
            g.flush(rep); g.memset(st, 0)
            g.run(k, 256, 256, [data.ptr, st.ptr], 131072)
            s = st.to_numpy(np.uint32, (256, 4)).max(1); s = s[s > 0] / 100.0
            out.append((np.median(s), s.max()))
        k.unload()
        o = np.median(np.array(out), axis=0)
        print(f"{str(kw):90s} med {o[0]:.2f}us ({kw.get('ntiles',144)/o[0]:.1f} KiB/us) max {o[1]:.2f}", flush=True)
    for frac in [2, 4]:
        for nload in [1, 2, 3]:
            for depth in [30, 48, 60]:
                run(frac=frac, nload=nload, depth=depth)
    for nload in [1, 3]:
        run(frac=2, nload=nload, depth=48, poll=10)
        run(frac=2, nload=nload, depth=48, poll=1)
        run(frac=2, nload=nload, depth=48, pat="P1")
        run(frac=2, nload=nload, depth=48, lds=False)
    run(frac=2, nload=3, depth=90)
    run(frac=4, nload=3, depth=90)
    run(frac=4, nload=3, depth=144)
```
